```python
import torch

def _softmax(x, axis=-1):
    return torch.softmax(x, dim=axis)
def _gelu(x):
    return torch.nn.functional.gelu(x, approximate="tanh")
def _silu(x):
    return torch.nn.functional.silu(x)
def _sigmoid(x):
    return torch.sigmoid(x)
def _layernorm(x, axis=-1, eps=1e-5):
    m = x.mean(dim=axis, keepdim=True)
    v = x.var(dim=axis, keepdim=True, unbiased=False)
    return (x - m) / torch.sqrt(v + eps)
def _scatter_add(tgt, idx, src, axis=0):
    return tgt.clone().index_add_(axis, idx, src)
def _segment_sum(src, seg, n):
    out = torch.zeros((n,) + src.shape[1:], dtype=src.dtype)
    return out.index_add_(0, seg, src)
def _pad(x, pw):
    flat = tuple(v for pair in reversed(pw) for v in pair)
    return torch.nn.functional.pad(x, flat)

kernel_name = 'recurrent_scan__ssm_conv_h3__dense_activation_squared_relu__prompt'

def setup_inputs():

    _w = (lambda a: (lambda t: t.to(torch.bfloat16) if t.is_floating_point() else t)(torch.as_tensor(a)))
    def _A_setup():
        B, S, D = 1, 2048, 512
        ks = 4
        return {
            "q": _w((lambda *s: torch.randn(*s, dtype=torch.bfloat16) * 0.05)(B, S, D)),
            "k": _w((lambda *s: torch.randn(*s, dtype=torch.bfloat16) * 0.2)(B, S, D)),
            "v": _w((lambda *s: torch.randn(*s, dtype=torch.bfloat16) * 0.2)(B, S, D)),
            "shift_k": _w((lambda *s: torch.randn(*s, dtype=torch.bfloat16) * 0.2)(D, ks) * 0.5),
            "ssm_k": _w((lambda *s: torch.randn(*s, dtype=torch.bfloat16) * 0.2)(D, S) * (1.0 / S ** 0.5)),
            "ssm_D": _w((lambda *s: torch.randn(*s, dtype=torch.bfloat16) * 0.2)(D)),
        }
    _A_in = _A_setup()

    def _B_setup():
        B, S, D, F = 1, 2048, 512, 1792
        return {
            "x": _w((lambda *s: torch.randn(*s, dtype=torch.bfloat16) * 0.05)(B, S, D)),
            "w1": _w((lambda *s: torch.randn(*s, dtype=torch.bfloat16) * 0.1)(D, F)),
            "b1": _w((lambda *s: torch.randn(*s, dtype=torch.bfloat16) * 0.8)(F)),
            "w2": _w((lambda *s: torch.randn(*s, dtype=torch.bfloat16) * 0.1)(F, D)),
            "b2": _w((lambda *s: torch.randn(*s, dtype=torch.bfloat16) * 6.4)(D)),
        }
    _B_in = _B_setup()

    return {
        "A_q": _A_in["q"],
        "A_k": _A_in["k"],
        "A_v": _A_in["v"],
        "A_shift_k": _A_in["shift_k"],
        "A_ssm_k": _A_in["ssm_k"],
        "A_ssm_D": _A_in["ssm_D"],
        "B_x": _B_in["x"],
        "B_w1": _B_in["w1"],
        "B_b1": _B_in["b1"],
        "B_w2": _B_in["w2"],
        "B_b2": _B_in["b2"],
    }

def reference(A_q, A_k, A_v, A_shift_k, A_ssm_k, A_ssm_D, B_x, B_w1, B_b1, B_w2, B_b2):
    def _A_ref(q, k, v, shift_k, ssm_k, ssm_D):
        B, S, D = q.shape
        ks = shift_k.shape[-1]
        k_pad = _pad(k, ((0, 0), (ks - 1, 0), (0, 0)))
        k_shift = torch.zeros_like(k)
        for t in range(ks):
            k_shift = k_shift + k_pad[:, t:t + S, :] * shift_k[:, ks - 1 - t][None, None, :]
        kv = k_shift * v
        L = 2 * S
        kv_pad = _pad(kv, ((0, 0), (0, S), (0, 0)))
        kf_pad = _pad(ssm_k, ((0, 0), (0, S)))
        kv_f = (lambda x, axes=(-2,-1): torch.fft.rfft2(x.float(), dim=axes))(kv_pad[:, None, :, :], axes=(1, 2))
        kf_f = (lambda x, axes=(-2,-1): torch.fft.rfft2(x.float(), dim=axes))(kf_pad[:, None, :], axes=(1, 2))
        kf_f = (lambda x, *d: x.permute(*d))(kf_f, 1, 2, 0)
        y_f = kv_f * kf_f[None, :, :, :]
        y = (lambda x, s, axes=(-2,-1): torch.fft.irfft2(x, s=s, dim=axes).to(torch.bfloat16))(y_f, (1, L), axes=(1, 2))[:, 0, :S, :]
        y = y + kv * ssm_D[None, None, :]
        return q * y

    def _B_ref(x, w1, b1, w2, b2):
        h = torch.einsum("bsd,df->bsf", x, w1) + b1
        zero = torch.zeros_like(h)
        r = torch.where(h > zero, h, zero)
        h = r * r
        out = torch.einsum("bsf,fd->bsd", h, w2) + b2
        return out

    x = A_q
    xn = _layernorm(x, axis=-1)
    s = _A_ref(xn, A_k, A_v, A_shift_k, A_ssm_k, A_ssm_D)
    g = _silu(_B_ref(xn, B_w1, B_b1, B_w2, B_b2))
    return x + s * g
```

```python
import re

REG_RE = re.compile(r'^(-|\|)?(abs\()?([vas])(\d+)\)?\|?$')
RNG_RE = re.compile(r'^(-)?([vas])\[(\d+):(\d+)\]$')

def regs_of(op):
    op = op.strip()
    m = RNG_RE.match(op)
    if m:
        k = m.group(2); return [(k, i) for i in range(int(m.group(3)), int(m.group(4)) + 1)]
    m = REG_RE.match(op)
    if m:
        return [(m.group(3), int(m.group(4)))]
    if op == 'vcc': return [('s', 'vcc')]
    if op in ('exec', 'exec_hi', 'exec_lo'): return [('s', 'exec')]
    if op == 'm0': return [('s', 'm0')]
    if op == 'scc': return []
    return []

TRANS = ('v_exp_f32', 'v_log_f32', 'v_rcp_f32', 'v_rsq_f32', 'v_sqrt_f32', 'v_sin_f32', 'v_cos_f32')

class Ins:
    __slots__ = ('text', 'op', 'kind', 'dst', 'src', 'dpp', 'lds_dma', 'wide_store', 'store_data', 'srcC', 'srcAB', 'sreads')
    def __init__(self, text):
        self.text = text
        t = text.strip()
        parts = t.split(None, 1)
        self.op = op = parts[0]
        rest = parts[1] if len(parts) > 1 else ''
        ops = []
        depth = 0; cur = ''
        for ch in rest:
            if ch in '[(': depth += 1
            if ch in '])': depth -= 1
            if ch == ',' and depth == 0:
                ops.append(cur.strip()); cur = ''
            else:
                cur += ch
        if cur.strip(): ops.append(cur.strip())
        mods = []
        if ops:
            lp = ops[-1].split()
            ops[-1] = lp[0]; mods = lp[1:]
        self.dpp = any(m.startswith(('row_', 'quad_perm', 'wave_')) for m in mods) or op.endswith('_dpp')
        self.lds_dma = False; self.wide_store = False; self.store_data = []
        self.srcC = []; self.srcAB = []
        dst = []; src = []
        R = regs_of
        if op.startswith('v_mfma'):
            self.kind = 'mfma'
            dst = R(ops[0]); self.srcAB = R(ops[1]) + R(ops[2]); self.srcC = R(ops[3]); src = self.srcAB + self.srcC
        elif op.startswith('v_cmp'):
            self.kind = 'valu'
            dst = R(ops[0]); src = sum((R(o) for o in ops[1:]), [])
            if op.startswith('v_cmpx'): dst += [('s', 'exec')]
        elif op in ('v_readfirstlane_b32', 'v_readlane_b32'):
            self.kind = 'valu'
            dst = R(ops[0]); src = sum((R(o) for o in ops[1:]), [])
        elif op.startswith('v_permlane'):
            self.kind = 'valu'
            dst = R(ops[0]) + R(ops[1]); src = list(dst)
        elif op.startswith('v_'):
            self.kind = 'valu'
            dst = R(ops[0]); src = sum((R(o) for o in ops[1:]), [])
            if op.startswith(('v_fmac', 'v_dot2c', 'v_pk_fmac')) or self.dpp and 'bound_ctrl' not in ' '.join(mods):
                src += dst
            if self.dpp: src += dst
            if op.startswith(('v_add_co', 'v_sub_co', 'v_addc_co', 'v_subb_co')):
                dst = R(ops[0]) + R(ops[1]); src = sum((R(o) for o in ops[2:]), [])
            if op.startswith('v_cndmask') and len(ops) == 3:
                src += [('s', 'vcc')]
            if op.startswith('v_writelane'): src += dst
        elif op.startswith('ds_'):
            self.kind = 'ds'
            if op.startswith(('ds_read', 'ds_bpermute', 'ds_swizzle', 'ds_permute')):
                dst = R(ops[0]); src = sum((R(o) for o in ops[1:]), [])
            else:
                src = sum((R(o) for o in ops), [])
        elif op.startswith('buffer_') or op.startswith('global_'):
            self.kind = 'vmem'
            is_load = '_load' in op
            if 'lds' in mods:
                self.lds_dma = True
                src = sum((R(o) for o in ops), []) + [('s', 'm0')]
            elif is_load:
                dst = R(ops[0]); src = sum((R(o) for o in ops[1:]), [])
            elif '_store' in op:
                if op.startswith('buffer_'):
                    self.store_data = R(ops[0])
                else:
                    self.store_data = R(ops[1])
                src = sum((R(o) for o in ops), [])
                self.wide_store = 'x4' in op or 'x3' in op
            elif op in ('buffer_wbl2', 'buffer_inv'):
                pass
            else:
                raise ValueError('unknown vmem ' + text)
        elif op.startswith('s_'):
            self.kind = 'salu'
            if op in ('s_waitcnt', 's_nop', 's_barrier', 's_endpgm', 's_sleep', 's_setprio', 's_branch') or op.startswith('s_cbranch'):
                self.kind = 'ctl'
                if op in ('s_cbranch_vccz', 's_cbranch_vccnz'): src = [('s', 'vcc')]
                if op in ('s_cbranch_execz', 's_cbranch_execnz'): src = [('s', 'exec')]
            elif op.startswith('s_load') or op in ('s_memtime', 's_memrealtime'):
                self.kind = 'smem'
                dst = R(ops[0]); src = sum((R(o) for o in ops[1:]), [])
            elif op.startswith('s_cmp'):
                src = sum((R(o) for o in ops), [])
            elif op.startswith(('s_and_saveexec', 's_or_saveexec')):
                dst = R(ops[0]) + [('s', 'exec')]; src = R(ops[1]) + [('s', 'exec')]
            else:
                dst = R(ops[0]); src = sum((R(o) for o in ops[1:]), [])
                if op in ('s_addk_i32', 's_mulk_i32'): src += dst
        else:
            raise ValueError('unknown instr ' + text)
        self.dst = dst; self.src = src

class Emitter:
    def __init__(self):
        self.out = []
        self.hist = []
        self.vm = []
        self.lg = []
        self.n_nops = 0
        self.n_instr = 0
        self.opt_depth = 0
        self.alt_hist = []
        self.stats = {}
    def raw(self, s): self.out.append(s)
    def comment(self, s): self.out.append('    ; ' + s)
    def label(self, name): self.out.append(name + ':')
    def _emit_wait(self, vm=None, lg=None):
        parts = []
        if vm is not None:
            assert 0 <= vm <= 63, vm
            parts.append(f'vmcnt({vm})')
            keep = self.vm[len(self.vm) - vm:] if vm > 0 else []
            self._retire_vm(vm)
        if lg is not None:
            lg = min(lg, 15)
            parts.append(f'lgkmcnt({lg})')
            self._retire_lg(lg)
        self._push('s_waitcnt ' + ' '.join(parts))
    def _counted(self): return [o for o in self.vm if not o['opt']]
    def _retire_vm(self, n):
        new = []
        cnt_after = 0
        for o in reversed(self.vm):
            if cnt_after >= n:
                pass
            else:
                new.append(o)
            if not o['opt']: cnt_after += 1
        self.vm = list(reversed(new))
    def _retire_lg(self, n):
        if any(o['smem'] for o in self.lg):
            if n == 0: self.lg = []
            return
        new = []; cnt_after = 0
        for o in reversed(self.lg):
            if cnt_after >= n: pass
            else: new.append(o)
            if not o['opt']: cnt_after += 1
        self.lg = list(reversed(new))
    def _need_vm(self, idx):
        n = sum(1 for o in self.vm[idx + 1:] if not o['opt'])
        return min(n, 63)
    def wait_vm_tag(self, tag):
        idxs = [i for i, o in enumerate(self.vm) if o['tag'] == tag]
        if idxs:
            self._emit_wait(vm=self._need_vm(idxs[-1]))
    def wait_vm(self, n): self._emit_wait(vm=n)
    def wait_lg(self, n=0): self._emit_wait(lg=n)
    def wait_lg_tag(self, tag):
        idxs = [i for i, o in enumerate(self.lg) if o['tag'] == tag]
        if idxs:
            if any(o['smem'] for o in self.lg): n = 0
            else: n = sum(1 for o in self.lg[idxs[-1] + 1:] if not o['opt'])
            self._emit_wait(lg=n)
    def _dist_required(self, ins, hist):
        need = 0
        dist = 0
        sset = set(ins.src); dset = set(ins.dst)
        for (p, st) in reversed(hist):
            if dist > 24: break
            req = 0
            pd = set(p.dst)
            if p.kind == 'valu':
                vd = {r for r in pd if r[0] in 'va'}
                sd = {r for r in pd if r[0] == 's'}
                if ins.kind == 'mfma' and vd & sset: req = max(req, 2)
                if ins.kind == 'valu' and ins.dpp and vd & sset: req = max(req, 2)
                if ins.kind == 'valu' and ins.op.startswith('v_permlane') and vd & sset: req = max(req, 2)
                if ins.op in ('v_readfirstlane_b32', 'v_readlane_b32') and vd & sset: req = max(req, 1)
                if ins.kind == 'vmem' and sd & sset: req = max(req, 5)
                if ins.kind == 'valu' and sd & sset: req = max(req, 4 if ins.op in ('v_readlane_b32', 'v_writelane_b32') else 2)
                if ins.kind in ('salu', 'ctl') and sd & sset: req = max(req, 4)
                if p.op in TRANS and ins.kind in ('valu', 'mfma') and vd & sset: req = max(req, 1)
                if ('s', 'exec') in pd and ins.kind == 'mfma': req = max(req, 4)
                if ('s', 'exec') in pd and ins.dpp: req = max(req, 5)
            if p.kind == 'mfma':
                if ins.kind == 'mfma':
                    if pd & set(ins.srcAB): req = max(req, 8)
                    if pd & set(ins.srcC) and set(ins.srcC) != pd: req = max(req, 6)
                    if pd & dset and dset != pd: req = max(req, 8)
                elif ins.kind in ('valu', 'ds', 'vmem'):
                    if pd & (sset | dset): req = max(req, 8)
                    if ins.kind == 'valu' and set(p.srcC) & dset: req = max(req, 3)
            if p.kind == 'salu' and ('s', 'm0') in pd and ins.lds_dma: req = max(req, 1)
            if p.kind == 'vmem' and p.wide_store and set(p.store_data) & dset:
                req = max(req, 2)
            if req > dist: need = max(need, req - dist)
            dist += st
        return need
    def _push(self, text):
        ins = Ins(text)
        st = 1
        if ins.op == 's_nop': st = int(text.split()[1], 0) + 1
        self.hist.append((ins, st))
        for h in self.alt_hist: h.append((ins, st))
        if len(self.hist) > 64: self.hist = self.hist[-40:]
        self.alt_hist = [h for h in self.alt_hist if len(h) < 200]
        self.out.append('    ' + text)
        self.n_instr += 1
        self.stats[ins.kind] = self.stats.get(ins.kind, 0) + 1
        return ins
    def i(self, text, tag=None):
        ins = Ins(text)
        touched = set(ins.src) | set(ins.dst)
        vi = [k for k, o in enumerate(self.vm) if o['dst'] & touched]
        li = [k for k, o in enumerate(self.lg) if o['dst'] & touched]
        wv = wl = None
        if vi: wv = self._need_vm(vi[-1])
        if li:
            if any(o['smem'] for o in self.lg): wl = 0
            else: wl = sum(1 for o in self.lg[li[-1] + 1:] if not o['opt'])
        if wv is not None or wl is not None:
            self._emit_wait(vm=wv, lg=wl)
        need = self._dist_required(ins, self.hist)
        for h in self.alt_hist:
            need = max(need, self._dist_required(ins, h))
        while need > 0:
            k = min(need, 16)
            self._push(f's_nop {k - 1}')
            self.n_nops += 1
            need -= k
        self._push(text)
        opt = self.opt_depth > 0
        if ins.kind == 'vmem' and ins.op not in ('buffer_wbl2', 'buffer_inv'):
            self.vm.append(dict(tag=tag, dst=set(ins.dst), opt=opt))
            assert len(self._counted()) <= 63, 'too many vmem ops in flight'
        elif ins.kind == 'ds':
            self.lg.append(dict(tag=tag, dst=set(ins.dst), smem=False, opt=opt))
            if len([o for o in self.lg if not o['opt']]) > 15 and not any(o['smem'] for o in self.lg):
                pass
        elif ins.kind == 'smem':
            self.lg.append(dict(tag=tag, dst=set(ins.dst), smem=True, opt=opt))
        return ins
    def barrier(self):
        self.i('s_barrier')
    def opt_begin(self, branch_text, label):
        self.i(f'{branch_text} {label}')
        self._snap = list(self.hist)
        self.opt_depth += 1
    def opt_end(self, label):
        self.opt_depth -= 1
        self.label(label)
        self.alt_hist.append(list(self._snap))
    def text(self): return '\n'.join(self.out) + '\n'

class RegAlloc:
    def __init__(self, kind, lo, hi):
        self.kind = kind; self.free_ = set(range(lo, hi)); self.named = {}; self.hw = 0
    def alloc(self, name, n=1, align=None):
        if align is None: align = 1 if n == 1 else (2 if n < 4 else 4)
        i = min(self.free_) if self.free_ else None
        cands = sorted(self.free_)
        for s in cands:
            if s % align: continue
            if all((s + k) in self.free_ for k in range(n)):
                for k in range(n): self.free_.discard(s + k)
                assert name not in self.named, name
                self.named[name] = (s, n)
                self.hw = max(self.hw, s + n)
                return s
        raise RuntimeError(f'out of {self.kind} regs for {name} ({n}); live: {self.named}')
    def free(self, *names):
        for name in names:
            s, n = self.named.pop(name)
            for k in range(n): self.free_.add(s + k)
```

```python
import sys, os
sys.path.insert(0, os.path.dirname(os.path.abspath(__file__)))
from emit import Emitter, RegAlloc

NAME = 'recurrent_scan__ssm_conv_h3__dense_activation_squared_relu__prompt'
KNAME = NAME + '_kernel'

WS_EPOCH = 0
WS_F1, WS_F2, WS_F3 = 1024, 2048, 3072
WS_STATS = 4096
WS_UT = 32768
UT_STRIDE = 4224
WS_YT = 0x220000
WS_H2 = 0x440000
WS_PROF = WS_H2 + 128 * 56 * 1024
WS_END = WS_PROF + 1024 * 256
LDS_W1 = 0
LDS_HP = 114688
LDS_KS = 123136
LDS_VS = LDS_KS + 9216
LDS_CS = LDS_VS + 8192
LDS_TOTAL = LDS_CS + 512
LDS_W2R = 0
LDS_CRED = LDS_KS
LDS_YT = LDS_KS
LDS_FRED = 0
TAG_INC = 0x9E3779B9

def vr(b, n=1): return f'v{b}' if n == 1 else f'v[{b}:{b+n-1}]'
def ar(b, n=1): return f'a{b}' if n == 1 else f'a[{b}:{b+n-1}]'
def s4(b): return f's[{b}:{b+3}]'
def s2_(b): return f's[{b}:{b+1}]'

class Fill:
    def __init__(self): self.q = []
    def add(self, *fs): self.q.extend(fs)
    def pop(self, n):
        for _ in range(n):
            if self.q: self.q.pop(0)()
    def flush(self):
        while self.q: self.q.pop(0)()

class Gen:
    SX, SK, SV, SH, SW1, SW2, SO, SWS = 4, 8, 12, 16, 20, 24, 28, 32
    PSK, PD, PB1, PB2 = 36, 38, 40, 42
    WV, XCD, IDX, RB, CB, ODD, ROT, RB2, DB, TAG = 44, 45, 46, 47, 48, 49, 50, 51, 52, 53
    T0, T1, T2, T3, T4, T5 = 54, 55, 56, 57, 58, 59
    CNT = 62
    SROW = 63
    KA = 64
    HB = 64
    ROT2 = 68
    TP0, TSG = 69, 70
    T6, T7 = 71, 72
    WG = 92
    DCH = 3
    TM = 96

    def __init__(self, opts):
        self.o = opts
        self.e = Emitter()
        self.V = RegAlloc('v', 1, 256)
        self.lbl = 0
    def L(self, base):
        self.lbl += 1
        return f'L{base}_{self.lbl}'
    def I(self, t, tag=None): return self.e.i(t, tag)
    def F(self, t, tag=None):
        return lambda: self.e.i(t, tag)

    def srd(self, base, ptr, nbytes):
        I = self.I
        I(f's_mov_b32 s{base}, s{ptr}')
        I(f's_and_b32 s{base+1}, s{ptr+1}, 0xffff')
        I(f's_mov_b32 s{base+2}, {nbytes}')
        I(f's_mov_b32 s{base+3}, 0x00020000')

    def stamp(self, n):
        if not self.o.get('prof'): return
        e = self.e
        e.i(f's_memtime s[{self.TM}:{self.TM+1}]')
        e.wait_lg(0)
        e.i(f'v_writelane_b32 v{self.vST}, s{self.TM}, {n}')

    def poll_issue(self, vaddr, vdst):
        self.I(f'buffer_load_dword v{vdst}, v{vaddr}, {s4(self.SWS)}, 0 offen sc1')
    def poll_check(self, vaddr, vdst):
        e = self.e
        ok = self.L('pok'); rt = self.L('prt')
        e.i(f'v_cmp_eq_u32 vcc, s{self.TAG}, v{vdst}')
        e.i('s_cmp_eq_u64 vcc, exec')
        e.i(f's_cbranch_scc1 {ok}')
        snap_vm = [dict(o) for o in e.vm]; snap_lg = [dict(o) for o in e.lg]; snap_h = list(e.hist)
        e.raw(f'    s_mov_b32 s{self.CNT}, 0x40000')
        e.label(rt)
        e.raw('    s_sleep 2')
        e.raw(f'    buffer_load_dword v{vdst}, v{vaddr}, {s4(self.SWS)}, 0 offen sc1')
        e.raw('    s_waitcnt vmcnt(0)')
        e.raw(f'    v_cmp_eq_u32 vcc, s{self.TAG}, v{vdst}')
        e.raw('    s_nop 3')
        e.raw('    s_cmp_eq_u64 vcc, exec')
        e.raw(f'    s_cbranch_scc1 {ok}')
        e.raw(f'    s_sub_u32 s{self.CNT}, s{self.CNT}, 1')
        e.raw(f'    s_cmp_lg_u32 s{self.CNT}, 0')
        e.raw(f'    s_cbranch_scc1 {rt}')
        e.label(ok)
        e.vm = snap_vm; e.lg = snap_lg; e.hist = snap_h

    def flag_store(self, base, vt0, vt1):
        e = self.e; I = self.I
        skip = self.L('fl')
        I(f's_cmp_eq_u32 s{self.WV}, 0')
        e.opt_begin('s_cbranch_scc0', skip)
        I(f's_lshl_b32 s{self.T0}, s{self.WG}, 2')
        I(f's_add_u32 s{self.T0}, s{self.T0}, {base}')
        I(f'v_mov_b32 v{vt0}, s{self.T0}')
        I(f'v_mov_b32 v{vt1}, s{self.TAG}')
        I('s_mov_b64 exec, 1')
        I(f'buffer_store_dword v{vt1}, v{vt0}, {s4(self.SWS)}, 0 offen sc1')
        I('s_mov_b64 exec, -1')
        e.opt_end(skip)

    def build(self):
        e = self.e; V = self.V; o = self.o; S = self; I = self.I
        I('s_cmp_ge_u32 s2, 256')
        I('s_cbranch_scc1 Lend')
        KA = S.KA
        I(f's_load_dwordx16 s[{KA}:{KA+15}], s[0:1], 0')
        I(f's_load_dwordx8 s[{KA+16}:{KA+23}], s[0:1], 64')
        I(f's_load_dwordx4 s[{KA+24}:{KA+27}], s[0:1], 96')
        vLane = S.vLane = V.alloc('lane'); vL16 = S.vL16 = V.alloc('l16')
        vS15 = S.vS15 = V.alloc('s15'); vG = S.vG = V.alloc('g')
        t0 = S.t0 = V.alloc('t0'); t1 = S.t1 = V.alloc('t1'); t2 = S.t2 = V.alloc('t2'); t3 = S.t3 = V.alloc('t3')
        if o.get('prof'):
            S.vST = V.alloc('stamp')
            I(f'v_mov_b32 v{S.vST}, 0')
        I(f's_mov_b32 s{S.WG}, s2')
        I(f'v_and_b32 v{vLane}, 63, v0')
        I(f'v_lshrrev_b32 v{t0}, 6, v0')
        I(f'v_lshlrev_b32 v{vL16}, 4, v{vLane}')
        I(f'v_readfirstlane_b32 s{S.WV}, v{t0}')
        I(f's_and_b32 s{S.XCD}, s2, 7')
        I(f's_lshr_b32 s{S.IDX}, s2, 3')
        I(f's_lshr_b32 s{S.T0}, s{S.XCD}, 1')
        I(f's_lshr_b32 s{S.T1}, s{S.IDX}, 3')
        I(f's_lshl_b32 s{S.RB}, s{S.T0}, 2')
        I(f's_add_u32 s{S.RB}, s{S.RB}, s{S.T1}')
        I(f's_and_b32 s{S.DB}, s{S.IDX}, 7')
        I(f's_and_b32 s{S.T2}, s{S.XCD}, 1')
        I(f's_lshl_b32 s{S.CB}, s{S.T2}, 3')
        I(f's_add_u32 s{S.CB}, s{S.CB}, s{S.DB}')
        I(f's_and_b32 s{S.ODD}, s{S.IDX}, 1')
        I(f's_lshl_b32 s{S.RB2}, s{S.RB}, 1')
        I(f's_add_u32 s{S.RB2}, s{S.RB2}, s{S.T2}')
        I(f's_lshl_b32 s{S.ROT}, s{S.T1}, 1')
        I(f's_add_u32 s{S.ROT}, s{S.ROT}, s{S.DB}')
        I(f's_add_u32 s{S.ROT}, s{S.ROT}, s{S.T0}')
        I(f's_and_b32 s{S.ROT}, s{S.ROT}, 7')
        I(f'v_and_b32 v{vS15}, 15, v{vLane}')
        I(f'v_lshrrev_b32 v{vG}, 4, v{vLane}')
        vKV = V.alloc('vKV')
        I(f'v_lshrrev_b32 v{t0}, 3, v{vLane}')
        I(f'v_and_b32 v{t1}, 7, v{vLane}')
        I(f'v_lshlrev_b32 v{t0}, 10, v{t0}')
        I(f'v_lshl_add_u32 v{vKV}, v{t1}, 4, v{t0}')
        vX = V.alloc('vX', 2)
        I(f's_lshl_b32 s{S.T3}, s{S.RB}, 7')
        I(f's_lshl_b32 s{S.T4}, s{S.WV}, 5')
        I(f's_add_u32 s{S.T3}, s{S.T3}, s{S.T4}')
        I(f'v_add_u32 v{t0}, s{S.T3}, v{vS15}')
        I(f'v_lshlrev_b32 v{t0}, 10, v{t0}')
        I(f'v_lshl_add_u32 v{vX}, v{vG}, 4, v{t0}')
        I(f'v_add_u32 v{vX+1}, 0x4000, v{vX}')
        vW = V.alloc('vW', 4)
        I(f's_mul_i32 s{S.T3}, s{S.WV}, 224')
        I(f's_mul_i32 s{S.T4}, s{S.CB}, 224')
        I(f's_lshl_b32 s{S.T5}, s{S.ODD}, 1')
        I(f's_movk_i32 s{S.CNT}, 4682')
        for k in range(4):
            I(f'v_add_u32 v{t0}, s{S.T3}, v{vLane}')
            if k: I(f'v_add_u32 v{t0}, {64*k}, v{t0}')
            I(f'v_mul_u32_u24 v{t1}, s{S.CNT}, v{t0}')
            I(f'v_lshrrev_b32 v{t1}, 16, v{t1}')
            I(f'v_mul_u32_u24 v{t2}, 14, v{t1}')
            I(f'v_sub_u32 v{t2}, v{t0}, v{t2}')
            I(f'v_add_u32 v{t2}, s{S.T5}, v{t2}')
            I(f'v_subrev_u32 v{t3}, 14, v{t2}')
            I(f'v_min_u32 v{t2}, v{t2}, v{t3}')
            I(f'v_and_b32 v{t0}, 0x33, v{t1}')
            I(f'v_and_b32 v{t3}, 4, v{t1}')
            I(f'v_lshl_or_b32 v{t0}, v{t3}, 1, v{t0}')
            I(f'v_and_b32 v{t3}, 8, v{t1}')
            I(f'v_lshrrev_b32 v{t3}, 1, v{t3}')
            I(f'v_or_b32 v{t0}, v{t0}, v{t3}')
            I(f'v_mul_u32_u24 v{t0}, 0xe00, v{t0}')
            I(f'v_lshl_add_u32 v{t0}, v{t2}, 4, v{t0}')
            I(f'v_add_u32 v{vW+k}, s{S.T4}, v{t0}')
        e.wait_lg(0)
        S.srd(S.SK, KA + 2, 2097152)
        S.srd(S.SV, KA + 4, 2097152)
        S.srd(S.SX, KA + 0, 2097152)
        S.srd(S.SW1, KA + 14, 512 * 1792 * 2)
        S.stamp(0)

        I(f's_lshl_b32 s{S.T0}, s{S.IDX}, 16')
        I(f's_lshl_b32 s{S.T1}, s{S.XCD}, 7')
        I(f's_add_u32 s{S.T0}, s{S.T0}, s{S.T1}')
        I(f's_lshl_b32 s{S.T1}, s{S.WV}, 1')
        for kk in range(2):
            I(f's_add_u32 s{S.T2}, s{S.T1}, {kk}')
            I(f's_add_u32 s{S.T3}, s{S.T2}, 1')
            I(f's_and_b32 s{S.T4}, s{S.T3}, 7')
            I(f's_lshl_b32 s{S.T4}, s{S.T4}, 4')
            I(f'v_xor_b32 v{t0}, s{S.T4}, v{vKV}')
            I(f's_lshl_b32 s{S.T3}, s{S.T3}, 10')
            I(f's_add_u32 m0, s{S.T3}, {LDS_KS}')
            I(f's_lshl_b32 s{S.T5}, s{S.T2}, 13')
            I(f's_add_u32 s{S.T5}, s{S.T5}, s{S.T0}')
            I(f'buffer_load_dwordx4 v{t0}, {s4(S.SK)}, s{S.T5} offen lds', tag='kv')
            I(f's_lshl_b32 s{S.T4}, s{S.T2}, 4')
            I(f'v_xor_b32 v{t1}, s{S.T4}, v{vKV}')
            I(f's_lshl_b32 s{S.T3}, s{S.T2}, 10')
            I(f's_add_u32 m0, s{S.T3}, {LDS_VS}')
            I(f'buffer_load_dwordx4 v{t1}, {s4(S.SV)}, s{S.T5} offen lds', tag='kv')
        I(f's_lshl_b32 s{S.T2}, s{S.WV}, 11')
        I(f's_add_u32 s{S.T2}, s{S.T2}, s{S.T0}')
        I(f's_sub_u32 s{S.T2}, s{S.T2}, 8192')
        I(f'v_add_u32 v{t2}, s{S.T2}, v{vKV}')
        I(f's_lshl_b32 s{S.T3}, s{S.WV}, 8')
        I(f's_add_u32 m0, s{S.T3}, {LDS_KS}')
        I('s_mov_b64 exec, 0xffff')
        I(f'buffer_load_dwordx4 v{t2}, {s4(S.SK)}, 0 offen lds', tag='kv')
        I('s_mov_b64 exec, -1')
        vSX = V.alloc('sx', 8)
        I(f's_lshl_b32 s{S.T2}, s{S.WG}, 3')
        I(f's_lshl_b32 s{S.T3}, s{S.WV}, 1')
        I(f's_add_u32 s{S.SROW}, s{S.T2}, s{S.T3}')
        I(f's_lshl_b32 s{S.T3}, s{S.SROW}, 10')
        I(f'buffer_load_dwordx4 {vr(vSX,4)}, v{vL16}, {s4(S.SX)}, s{S.T3} offen')
        I(f'buffer_load_dwordx4 {vr(vSX+4,4)}, v{vL16}, {s4(S.SX)}, s{S.T3} offen offset:1024')
        I(f's_mov_b64 {s2_(S.PSK)}, s[{KA+6}:{KA+7}]')
        vTap = V.alloc('tap', 4)
        vCP = V.alloc('cp')
        I(f's_lshl_b32 s{S.T2}, s{S.WV}, 3')
        I(f'v_lshrrev_b32 v{vCP}, 3, v{vLane}')
        I(f'v_add_u32 v{vCP}, s{S.T2}, v{vCP}')
        I(f's_lshl_b32 s{S.T3}, s{S.XCD}, 9')
        I(f'v_lshlrev_b32 v{t3}, 4, v{vCP}')
        I(f'v_add_u32 v{t3}, s{S.T3}, v{t3}')
        I(f'global_load_dwordx4 {vr(vTap,4)}, v{t3}, {s2_(S.PSK)}')

        NXS = 4
        vXF = V.alloc('xf', 16 * NXS)
        def g1_loads(T):
            I(f's_add_u32 s{S.T0}, s{S.ROT}, {T}')
            I(f's_and_b32 s{S.T0}, s{S.T0}, 7')
            I(f's_lshl_b32 s{S.T1}, s{S.T0}, 7')
            b = vXF + (T % NXS) * 16
            for ks in range(2):
                for sb in range(2):
                    off = f' offset:{64*ks}' if ks else ''
                    I(f'buffer_load_dwordx4 {vr(b + (ks*2+sb)*4, 4)}, v{vX+sb}, {s4(S.SX)}, s{S.T1} offen{off}', tag=f'x{T}')
            I(f's_mul_i32 s{S.T1}, s{S.T0}, {64*3584}')
            I(f's_mul_i32 s{S.T2}, s{S.WV}, 3584')
            for k in range(4):
                I(f's_add_u32 m0, s{S.T2}, {LDS_W1 + T*14336 + k*1024}')
                if k == 3: I('s_mov_b32 exec_hi, 0')
                I(f'buffer_load_dwordx4 v{vW+k}, {s4(S.SW1)}, s{S.T1} offen lds', tag=f'w{T}')
                if k == 3: I('s_mov_b32 exec_hi, -1')
        g1_loads(0)
        S.srd(S.SH, KA + 8, 2097152)
        S.srd(S.SWS, KA + 26, WS_END)
        S.srd(S.SW2, KA + 18, 1792 * 512 * 2)
        S.srd(S.SO, KA + 22, 2097152)
        I(f's_mov_b64 {s2_(S.PD)}, s[{KA+10}:{KA+11}]')
        I(f's_mov_b64 {s2_(S.PB1)}, s[{KA+16}:{KA+17}]')
        I(f's_mov_b64 {s2_(S.PB2)}, s[{KA+20}:{KA+21}]')
        vE = V.alloc('epoch')
        I(f'v_mov_b32 v{t0}, {WS_EPOCH}')
        I(f'buffer_load_dword v{vE}, v{t0}, {s4(S.SWS)}, 0 offen sc1')
        DCH = S.DCH
        I(f's_lshr_b32 s{S.T0}, s{S.WV}, 1')
        I(f's_lshl_b32 s{DCH}, s{S.XCD}, 6')
        I(f's_lshl_b32 s{S.T1}, s{S.IDX}, 1')
        I(f's_add_u32 s{DCH}, s{DCH}, s{S.T1}')
        I(f's_add_u32 s{DCH}, s{DCH}, s{S.T0}')
        I(f's_mul_i32 s{S.T2}, s{S.T0}, {UT_STRIDE}')
        I(f's_and_b32 s{S.T3}, s{S.WV}, 1')
        I(f's_lshl_b32 s{S.T3}, s{S.T3}, 11')
        I(f's_add_u32 s{S.T2}, s{S.T2}, s{S.T3}')
        I(f's_lshl_b32 s{S.T4}, s{DCH}, 12')
        I(f's_add_u32 s{S.T4}, s{S.T4}, s{S.T3}')
        for kk in range(2):
            I(f's_add_u32 m0, s{S.T2}, {LDS_HP + 128 + kk*1024}')
            if kk: I(f's_add_u32 s{S.T4}, s{S.T4}, 1024')
            I(f'buffer_load_dwordx4 v{vL16}, {s4(S.SH)}, s{S.T4} offen lds', tag='hp')
        vH0 = V.alloc('h0', 2)
        I(f's_lshl_b32 s{S.T4}, s{DCH}, 12')
        I(f'v_mov_b32 v{t0}, s{S.T4}')
        I(f'buffer_load_ushort v{vH0}, v{t0}, {s4(S.SH)}, 0 offen')
        I(f's_lshl_b32 s{S.T4}, s{DCH}, 1')
        I(f'v_mov_b32 v{t1}, s{S.T4}')
        I(f'global_load_ushort v{vH0+1}, v{t1}, {s2_(S.PD)}')
        g1_loads(1)
        vDum = V.alloc('dummy', 8)
        I(f's_mul_i32 s{S.T0}, s{S.WG}, 7')
        I(f's_add_u32 s{S.T0}, s{S.T0}, s{S.WV}')
        I(f's_lshl_b32 s{S.T0}, s{S.T0}, 10')
        I(f'buffer_load_dwordx4 {vr(vDum,4)}, v{vL16}, {s4(S.SW2)}, s{S.T0} offen')
        I(f's_add_u32 s{S.T0}, s{S.T0}, 4096')
        I(f'buffer_load_dwordx4 {vr(vDum+4,4)}, v{vL16}, {s4(S.SW2)}, s{S.T0} offen', tag='dum')
        S.stamp(1)
        vZ = V.alloc('z', 4)
        for k in range(4): I(f'v_mov_b32 v{vZ+k}, 0')
        I(f'v_and_b32 v{t0}, 7, v{vLane}')
        I(f'v_lshlrev_b32 v{t0}, 4, v{t0}')
        I(f's_lshr_b32 s{S.T0}, s{S.WV}, 1')
        I(f's_mul_i32 s{S.T0}, s{S.T0}, {UT_STRIDE}')
        I(f's_add_u32 s{S.T0}, s{S.T0}, {LDS_HP}')
        I(f'v_add_u32 v{t0}, s{S.T0}, v{t0}')
        I(f'ds_write_b128 v{t0}, {vr(vZ,4)}')
        I(f'v_and_b32 v{t1}, 31, v{vLane}')
        I(f'v_lshlrev_b32 v{t1}, 4, v{t1}')
        I(f'v_add_u32 v{t1}, {LDS_CS}, v{t1}')
        I(f'ds_write_b128 v{t1}, {vr(vZ,4)}')
        S.ACS = 224
        for k in range(28): I(f'v_accvgpr_write_b32 a{S.ACS+k}, 0')

        S.stats_phase(vSX)
        V.free('sx')
        e.wait_vm_tag('kv')
        e.wait_lg(0)
        e.barrier()
        S.stamp(2)
        S.prepass(vCP, vTap, vZ)
        V.free('tap', 'cp', 'vKV', 'z')
        S.stamp(3)
        I(f'v_readfirstlane_b32 s{S.TAG}, v{vE}')
        I(f's_add_u32 s{S.TAG}, s{S.TAG}, 0x{TAG_INC:x}')
        V.free('epoch')
        I(f'v_lshlrev_b32 v{vH0}, 16, v{vH0}')
        I(f'v_lshlrev_b32 v{vH0+1}, 16, v{vH0+1}')
        I(f'v_add_f32 v{vH0}, v{vH0}, v{vH0+1}')
        I(f'v_cvt_pk_bf16_f32 v{vH0}, v{vH0}, v{vH0}')
        I(f's_lshr_b32 s{S.T0}, s{S.WV}, 1')
        I(f's_mul_i32 s{S.T0}, s{S.T0}, {UT_STRIDE}')
        I(f's_add_u32 s{S.T0}, s{S.T0}, {LDS_HP + 128}')
        I(f'v_mov_b32 v{t0}, s{S.T0}')
        e.wait_vm_tag('hp')
        I(f'ds_write_b16 v{t0}, v{vH0}')
        V.free('h0')
        if o.get('stop') == 'prepass':
            e.wait_vm(0); e.barrier(); S.flag_store(WS_F1, t0, t1); return S.finish()
        S.gemm1(vX, vW, vXF, NXS, g1_loads)
        if o.get('stop') == 'gemm1':
            S.w2f.flush() if hasattr(S, 'w2f') else None
            e.wait_vm(0); e.barrier(); S.flag_store(WS_F2, t0, t1); return S.finish()
        S.conv()
        if o.get('stop') == 'conv':
            e.wait_vm(0); e.barrier(); S.flag_store(WS_F3, t0, t1); return S.finish()
        S.gemm2()
        S.finish()

    def finish(self):
        e = self.e; S = self; I = self.I
        S.stamp(40)
        skip = S.L('ep')
        t0, t1 = S.t0, S.t1
        I(f's_or_b32 s{S.T0}, s{S.WG}, s{S.WV}')
        I(f's_cmp_eq_u32 s{S.T0}, 0')
        I(f's_cbranch_scc0 {skip}')
        vq = S.V.alloc('epq', 4)
        rt = S.L('eprt'); ok = S.L('epok')
        I(f'v_add_u32 v{t0}, {WS_F1}, v{S.vL16}')
        e.raw(f'    s_mov_b32 s{S.CNT}, 0x40000')
        e.label(rt)
        e.raw(f'    buffer_load_dwordx4 {vr(vq,4)}, v{t0}, {s4(S.SWS)}, 0 offen sc1')
        e.raw('    s_waitcnt vmcnt(0)')
        e.raw(f'    v_xor_b32 v{vq}, s{S.TAG}, v{vq}')
        e.raw(f'    v_xor_b32 v{vq+1}, s{S.TAG}, v{vq+1}')
        e.raw(f'    v_xor_b32 v{vq+2}, s{S.TAG}, v{vq+2}')
        e.raw(f'    v_xor_b32 v{vq+3}, s{S.TAG}, v{vq+3}')
        e.raw(f'    v_or_b32 v{vq}, v{vq}, v{vq+1}')
        e.raw(f'    v_or3_b32 v{vq}, v{vq}, v{vq+2}, v{vq+3}')
        e.raw(f'    v_cmp_eq_u32 vcc, 0, v{vq}')
        e.raw('    s_nop 3')
        e.raw('    s_cmp_eq_u64 vcc, exec')
        e.raw(f'    s_cbranch_scc1 {ok}')
        e.raw('    s_sleep 2')
        e.raw(f'    s_sub_u32 s{S.CNT}, s{S.CNT}, 1')
        e.raw(f'    s_cmp_lg_u32 s{S.CNT}, 0')
        e.raw(f'    s_cbranch_scc1 {rt}')
        e.raw(f'    s_branch {skip}')
        e.label(ok)
        e.raw(f'    v_mov_b32 v{t0}, {WS_EPOCH}')
        e.raw(f'    v_mov_b32 v{t1}, s{S.TAG}')
        e.raw('    s_mov_b64 exec, 1')
        e.raw(f'    buffer_store_dword v{t1}, v{t0}, {s4(S.SWS)}, 0 offen sc1')
        e.raw('    s_mov_b64 exec, -1')
        e.label(skip)
        S.V.free('epq')
        if S.o.get('prof'):
            I(f's_lshl_b32 s{S.T0}, s{S.WG}, 2')
            I(f's_add_u32 s{S.T0}, s{S.T0}, s{S.WV}')
            I(f's_lshl_b32 s{S.T0}, s{S.T0}, 8')
            I(f's_add_u32 s{S.T0}, s{S.T0}, {WS_PROF}')
            I(f'v_lshlrev_b32 v{t0}, 2, v{S.vLane}')
            I(f'buffer_store_dword v{S.vST}, v{t0}, {s4(S.SWS)}, s{S.T0} offen')
        e.label('Lend')
        e.raw('    s_endpgm')

    def dpp_sum(self, regs):
        I = self.I
        for sh in ('row_shr:1', 'row_shr:2', 'row_shr:4', 'row_shr:8'):
            for r in regs: I(f'v_add_f32_dpp v{r}, v{r}, v{r} {sh} row_mask:0xf bank_mask:0xf bound_ctrl:0')
        for r in regs: I(f'v_add_f32_dpp v{r}, v{r}, v{r} row_bcast:15 row_mask:0xa bank_mask:0xf')
        for r in regs: I(f'v_add_f32_dpp v{r}, v{r}, v{r} row_bcast:31 row_mask:0xc bank_mask:0xf')

    def stats_phase(self, vSX):
        S = self; V = self.V; I = self.I; e = self.e
        f = V.alloc('stf', 16); acc = V.alloc('sta', 2); res = V.alloc('stres', 4)
        for row in range(2):
            for k in range(4):
                I(f'v_lshlrev_b32 v{f+row*8+2*k}, 16, v{vSX+row*4+k}')
                I(f'v_and_b32 v{f+row*8+2*k+1}, 0xffff0000, v{vSX+row*4+k}')
        for row in range(2):
            b = f + row * 8
            I(f'v_add_f32 v{acc+row}, v{b}, v{b+1}')
        for k in range(2, 8):
            for row in range(2):
                I(f'v_add_f32 v{acc+row}, v{acc+row}, v{f+row*8+k}')
        S.dpp_sum([acc, acc + 1])
        I(f'v_readlane_b32 s{S.T0}, v{acc}, 63')
        I(f'v_readlane_b32 s{S.T1}, v{acc+1}, 63')
        I(f'v_mov_b32 v{S.t0}, 0x3b000000')
        I(f'v_mul_f32 v{res}, s{S.T0}, v{S.t0}')
        I(f'v_mul_f32 v{res+2}, s{S.T1}, v{S.t0}')
        for row in range(2):
            for k in range(8):
                I(f'v_sub_f32 v{f+row*8+k}, v{f+row*8+k}, v{res+2*row}')
        for row in range(2):
            I(f'v_mul_f32 v{acc+row}, v{f+row*8}, v{f+row*8}')
        for k in range(1, 8):
            for row in range(2):
                I(f'v_fmac_f32 v{acc+row}, v{f+row*8+k}, v{f+row*8+k}')
        S.dpp_sum([acc, acc + 1])
        I(f'v_readlane_b32 s{S.T0}, v{acc}, 63')
        I(f'v_readlane_b32 s{S.T1}, v{acc+1}, 63')
        I(f'v_mul_f32 v{res+1}, s{S.T0}, v{S.t0}')
        I(f'v_mul_f32 v{res+3}, s{S.T1}, v{S.t0}')
        def rnd(r):
            I(f'v_cvt_pk_bf16_f32 v{r}, v{r}, v{r}')
            I(f'v_and_b32 v{r}, 0xffff0000, v{r}')
        for row in range(2): rnd(res + 2 * row)
        for row in range(2): rnd(res + 2 * row + 1)
        for row in range(2): I(f'v_add_f32 v{res+2*row+1}, 0x3727c5ac, v{res+2*row+1}')
        for row in range(2): rnd(res + 2 * row + 1)
        for row in range(2): I(f'v_sqrt_f32 v{res+2*row+1}, v{res+2*row+1}')
        for row in range(2): rnd(res + 2 * row + 1)
        for row in range(2): I(f'v_rcp_f32 v{res+2*row+1}, v{res+2*row+1}')
        I(f's_lshl_b32 s{S.T0}, s{S.SROW}, 3')
        I(f's_add_u32 s{S.T0}, s{S.T0}, {WS_STATS}')
        I(f'v_mov_b32 v{S.t1}, s{S.T0}')
        I('s_mov_b64 exec, 1')
        I(f'buffer_store_dwordx4 {vr(res,4)}, v{S.t1}, {s4(S.SWS)}, 0 offen sc1', tag='pst')
        I('s_mov_b64 exec, -1')
        V.free('stf', 'sta')
        I('s_nop 1')
        V.free('stres')

    def prepass(self, vCP, vTap, vZ):
        S = self; V = self.V; I = self.I; e = self.e
        t0, t1, t2, t3 = S.t0, S.t1, S.t2, S.t3
        aH = V.alloc('aH'); aM = V.alloc('aM'); aV = V.alloc('aV')
        I(f'v_and_b32 v{t0}, 7, v{S.vLane}')
        I(f'v_lshrrev_b32 v{t1}, 2, v{vCP}')
        I(f'v_and_b32 v{t2}, 3, v{vCP}')
        I(f'v_lshlrev_b32 v{t2}, 2, v{t2}')
        I(f'v_xor_b32 v{t3}, v{t1}, v{t0}')
        I(f'v_lshl_add_u32 v{t3}, v{t3}, 4, v{t2}')
        I(f'v_lshl_add_u32 v{t3}, v{t0}, 10, v{t3}')
        I(f'v_add_u32 v{aH}, {LDS_KS}, v{t3}')
        I(f'v_add_u32 v{aV}, {LDS_VS}, v{t3}')
        I(f'v_add_u32 v{aM}, 1, v{t0}')
        I(f'v_and_b32 v{t3}, 7, v{aM}')
        I(f'v_xor_b32 v{t3}, v{t1}, v{t3}')
        I(f'v_lshl_add_u32 v{t3}, v{t3}, 4, v{t2}')
        I(f'v_lshl_add_u32 v{t3}, v{aM}, 10, v{t3}')
        I(f'v_add_u32 v{aM}, {LDS_KS}, v{t3}')
        kr = V.alloc('kr', 11); vv = V.alloc('vv', 8)
        for j in range(3): I(f'ds_read_b32 v{kr+j}, v{aH} offset:{(5+j)*128}')
        for j in range(8): I(f'ds_read_b32 v{kr+3+j}, v{aM} offset:{j*128}')
        for j in range(8): I(f'ds_read_b32 v{vv+j}, v{aV} offset:{j*128}')
        tp = V.alloc('tp', 8)
        for j in range(4):
            for ch in range(2):
                src = vTap + ch * 2 + j // 2
                if j % 2 == 0: I(f'v_lshlrev_b32 v{tp+2*j+ch}, 16, v{src}')
                else: I(f'v_and_b32 v{tp+2*j+ch}, 0xffff0000, v{src}')
        kf = V.alloc('kf', 22); vf = V.alloc('vf', 16)
        for j in range(11):
            I(f'v_lshlrev_b32 v{kf+2*j}, 16, v{kr+j}')
            I(f'v_and_b32 v{kf+2*j+1}, 0xffff0000, v{kr+j}')
        for j in range(8):
            I(f'v_lshlrev_b32 v{vf+2*j}, 16, v{vv+j}')
            I(f'v_and_b32 v{vf+2*j+1}, 0xffff0000, v{vv+j}')
        V.free('kr', 'vv')
        u = V.alloc('u', 16)
        for s in range(8):
            I(f'v_pk_mul_f32 {vr(u+2*s,2)}, {vr(kf+2*(3+s),2)}, {vr(tp,2)}')
        for j in range(1, 4):
            for s in range(8):
                I(f'v_pk_fma_f32 {vr(u+2*s,2)}, {vr(kf+2*(3+s-j),2)}, {vr(tp+2*j,2)}, {vr(u+2*s,2)}')
        for s in range(8):
            I(f'v_pk_mul_f32 {vr(u+2*s,2)}, {vr(u+2*s,2)}, {vr(vf+2*s,2)}')
        V.free('kf', 'vf', 'tp')
        pk = V.alloc('pk', 8)
        for ch in range(2):
            for k in range(4):
                I(f'v_cvt_pk_bf16_f32 v{pk+ch*4+k}, v{u+2*(7-2*k)+ch}, v{u+2*(6-2*k)+ch}')
        I(f's_lshl_b32 s{S.T0}, s{S.XCD}, 6')
        I(f'v_lshl_add_u32 v{t1}, v{vCP}, 1, s{S.T0}')
        I(f's_movk_i32 s{S.T1}, {UT_STRIDE}')
        I(f'v_mul_u32_u24 v{t1}, s{S.T1}, v{t1}')
        I(f's_lshl_b32 s{S.T2}, s{S.IDX}, 7')
        I(f's_sub_u32 s{S.T2}, {WS_UT}, s{S.T2}')
        I(f'v_lshlrev_b32 v{t2}, 4, v{t0}')
        I(f'v_sub_u32 v{t2}, 4080, v{t2}')
        I(f'v_add_u32 v{t2}, v{t1}, v{t2}')
        I(f'buffer_store_dwordx4 {vr(pk,4)}, v{t2}, {s4(S.SWS)}, s{S.T2} offen sc1', tag='pst')
        I(f'v_add_u32 v{t3}, {UT_STRIDE}, v{t2}')
        I(f'buffer_store_dwordx4 {vr(pk+4,4)}, v{t3}, {s4(S.SWS)}, s{S.T2} offen sc1', tag='pst')
        skip = S.L('pad')
        I(f's_cmp_eq_u32 s{S.IDX}, 0')
        e.opt_begin('s_cbranch_scc0', skip)
        I(f'v_cmp_eq_u32 vcc, 0, v{t0}')
        I(f's_mov_b32 s{S.T2}, {WS_UT + 4096}')
        I('s_and_saveexec_b64 s[60:61], vcc')
        I(f'buffer_store_dwordx4 {vr(vZ,4)}, v{t1}, {s4(S.SWS)}, s{S.T2} offen sc1')
        I(f'v_add_u32 v{t3}, {UT_STRIDE}, v{t1}')
        I(f'buffer_store_dwordx4 {vr(vZ,4)}, v{t3}, {s4(S.SWS)}, s{S.T2} offen sc1')
        I('s_mov_b64 exec, -1')
        e.opt_end(skip)
        I('s_nop 1')
        V.free('pk', 'u', 'aH', 'aM', 'aV')

    def gemm1(self, vX, vW, vXF, NXS, g1_loads):
        S = self; V = self.V; I = self.I; e = self.e
        t0, t1, t2, t3 = S.t0, S.t1, S.t2, S.t3
        vWT = V.alloc('vWT', 2)
        I(f'v_lshrrev_b32 v{t0}, 2, v{S.vLane}')
        I(f'v_and_b32 v{t0}, 3, v{t0}')
        I(f'v_and_b32 v{t1}, 1, v{S.vG}')
        I(f'v_lshl_add_u32 v{t0}, v{t1}, 2, v{t0}')
        I(f'v_lshrrev_b32 v{t1}, 1, v{S.vG}')
        I(f'v_lshl_add_u32 v{t0}, v{t1}, 4, v{t0}')
        I(f'v_mul_u32_u24 v{t0}, 224, v{t0}')
        I(f'v_and_b32 v{t1}, 3, v{S.vLane}')
        I(f'v_lshl_add_u32 v{vWT}, v{t1}, 3, v{t0}')
        if LDS_W1: I(f'v_add_u32 v{vWT}, {LDS_W1}, v{vWT}')
        I(f'v_add_u32 v{vWT+1}, {4*14336}, v{vWT}')
        acc = V.alloc('acc1', 56); wf = V.alloc('wf', 56); ones = V.alloc('ones', 4)
        for k in range(4): I(f'v_mov_b32 v{ones+k}, 0x3f803f80')
        def reads(a):
            T, ks = divmod(a, 2)
            base = vWT + (1 if T >= 4 else 0)
            off0 = (T % 4) * 14336 + ks * 7168
            L = []
            for j in range(7):
                for hh in range(2):
                    r = wf + (a % 2) * 28 + j * 4 + hh * 2
                    L.append(S.F(f'ds_read_b64_tr_b16 {vr(r,2)}, v{base} offset:{off0 + hh*1792 + j*32}'))
            return L
        vP1 = V.alloc('p1a'); vP1r = V.alloc('p1r')
        I(f'v_lshlrev_b32 v{t0}, 3, v{S.vLane}')
        I(f'v_add_u32 v{t0}, s{S.XCD}, v{t0}')
        I(f's_lshl_b32 s{S.T0}, s{S.RB}, 4')
        I(f'v_add_u32 v{t1}, s{S.T0}, v{S.vS15}')
        I(f'v_cmp_gt_u32 vcc, 32, v{S.vLane}')
        I(f'v_cndmask_b32 v{t0}, v{t1}, v{t0}, vcc')
        I(f'v_lshlrev_b32 v{t0}, 2, v{t0}')
        I(f'v_add_u32 v{vP1}, {WS_F1}, v{t0}')
        vB1 = V.alloc('b1', 14)
        e.wait_vm_tag('w0')
        e.wait_lg(0)
        e.barrier()
        g1_loads(2)
        for f in reads(0): f()
        fill = Fill()
        for a in range(16):
            T, ks = divmod(a, 2)
            nxt = a + 1
            if nxt < 16 and nxt % 2 == 0:
                Tn = nxt // 2
                e.wait_vm_tag(f'w{Tn}')
                e.barrier()
                if Tn == 2: S.flag_store(WS_F1, t0, t1)
                if Tn + 2 < 8: g1_loads(Tn + 2)
                if Tn == 6:
                    I(f's_mul_i32 s{S.T0}, s{S.CB}, 224')
                    I(f'v_lshlrev_b32 v{t0}, 3, v{S.vG}')
                    I(f'v_add_u32 v{t0}, s{S.T0}, v{t0}')
                    I(f's_lshl_b32 s{S.T1}, s{S.ODD}, 5')
                    I(f'v_add_u32 v{t1}, s{S.T1}, v{t0}')
                    for j in range(6):
                        I(f'global_load_dwordx2 {vr(vB1+2*j,2)}, v{t1}, {s2_(S.PB1)} offset:{32*j}')
                    I(f's_xor_b32 s{S.T1}, s{S.ODD}, 1')
                    I(f's_mul_i32 s{S.T1}, s{S.T1}, 192')
                    I(f'v_add_u32 v{t1}, s{S.T1}, v{t0}')
                    I(f'global_load_dwordx2 {vr(vB1+12,2)}, v{t1}, {s2_(S.PB1)}')
                if Tn == 7:
                    S.poll_issue(vP1, vP1r)
            e.wait_lg(0)
            if nxt < 16: fill.add(*reads(nxt))
            xb = vXF + (T % NXS) * 16 + ks * 8
            for j in range(7):
                for sb in range(2):
                    d = acc + j * 8 + sb * 4
                    c = '0' if a == 0 else vr(d, 4)
                    I(f'v_mfma_f32_16x16x32_bf16 {vr(d,4)}, {vr(wf+(a%2)*28+j*4,4)}, {vr(xb+sb*4,4)}, {c}')
                    fill.pop(2)
            fill.flush()
            skip = S.L('cs')
            I(f's_cmp_eq_u32 s{S.WV}, {T//2}')
            e.opt_begin('s_cbranch_scc0', skip)
            for j in range(7):
                I(f'v_mfma_f32_16x16x32_bf16 {ar(S.ACS+4*j,4)}, {vr(ones,4)}, {vr(wf+(a%2)*28+j*4,4)}, {ar(S.ACS+4*j,4)}')
            e.opt_end(skip)
            if a % 2 == 1: S.stamp(4 + T)
        V.free('wf', 'ones', 'vWT', 'xf', 'vX', 'vW', 'dummy')
        e.wait_vm_tag('dum')
        I(f'v_lshlrev_b32 v{t0}, 2, v{S.vS15}')
        I(f'v_add_u32 v{t0}, {LDS_CS}, v{t0}')
        I('s_mov_b64 exec, 0xffff')
        for j in range(7):
            I(f'ds_add_f32 v{t0}, a{S.ACS+4*j} offset:{64*j}')
        I('s_mov_b64 exec, -1')
        S.poll_check(vP1, vP1r)
        V.free('p1a', 'p1r')
        vU = S.vU = V.alloc('U', 32)
        I(f'v_and_b32 v{t0}, 3, v{S.vLane}')
        I(f'v_lshrrev_b32 v{t1}, 2, v{S.vS15}')
        I(f'v_lshl_add_u32 v{t0}, v{t1}, 9, v{t0}')
        I(f'v_lshlrev_b32 v{t1}, 3, v{S.vG}')
        I(f'v_sub_u32 v{t0}, v{t1}, v{t0}')
        I(f'v_add_u32 v{t0}, 1539, v{t0}')
        I(f'v_lshlrev_b32 v{t0}, 1, v{t0}')
        I(f's_mul_i32 s{S.T0}, s{S.DCH}, {UT_STRIDE}')
        I(f's_and_b32 s{S.T1}, s{S.WV}, 1')
        I(f's_lshl_b32 s{S.T1}, s{S.T1}, 6')
        I(f's_add_u32 s{S.T0}, s{S.T0}, s{S.T1}')
        I(f's_add_u32 s{S.T0}, s{S.T0}, {WS_UT}')
        if not S.o.get('stop') == 'gemm1':
            for jj in range(8):
                I(f'buffer_load_dwordx4 {vr(vU+4*jj,4)}, v{t0}, {s4(S.SWS)}, s{S.T0} offen offset:{128*jj} sc1')
        vSt = V.alloc('st', 4)
        I(f's_lshl_b32 s{S.T0}, s{S.RB}, 7')
        I(f's_lshl_b32 s{S.T1}, s{S.WV}, 5')
        I(f's_add_u32 s{S.T0}, s{S.T0}, s{S.T1}')
        I(f'v_add_u32 v{t1}, s{S.T0}, v{S.vS15}')
        I(f'v_lshlrev_b32 v{t1}, 3, v{t1}')
        I(f's_mov_b32 s{S.T1}, {WS_STATS}')
        I(f'buffer_load_dwordx2 {vr(vSt,2)}, v{t1}, {s4(S.SWS)}, s{S.T1} offen sc1')
        I(f'buffer_load_dwordx2 {vr(vSt+2,2)}, v{t1}, {s4(S.SWS)}, s{S.T1} offen offset:128 sc1')
        e.wait_lg(0)
        e.barrier()
        S.stamp(13)
        S.w2_setup()
        for n in range(3): [f() for f in S.w2_dma(n)]
        c4 = V.alloc('c4', 28)
        I(f'v_lshlrev_b32 v{t0}, 4, v{S.vG}')
        I(f'v_add_u32 v{t0}, {LDS_CS}, v{t0}')
        for j in range(7): I(f'ds_read_b128 {vr(c4+4*j,4)}, v{t0} offset:{64*j}')
        bf = V.alloc('b1f', 28)
        for j in range(7):
            for k in range(2):
                I(f'v_lshlrev_b32 v{bf+4*j+2*k}, 16, v{vB1+2*j+k}')
                I(f'v_and_b32 v{bf+4*j+2*k+1}, 0xffff0000, v{vB1+2*j+k}')
        V.free('b1')
        mr = V.alloc('mr', 2)
        I(f'v_mul_f32 v{mr}, v{vSt}, v{vSt+1}')
        I(f'v_mul_f32 v{mr+1}, v{vSt+2}, v{vSt+3}')
        I(f's_mul_i32 s{S.T0}, s{S.CB}, 7')
        I(f's_add_u32 s{S.TP0}, s{S.T0}, s{S.ODD}')
        I(f's_lshr_b32 s{S.TP0}, s{S.TP0}, 1')
        I(f's_mul_i32 s{S.T1}, s{S.ODD}, 7')
        I(f's_add_u32 s{S.TSG}, s{S.T0}, 6')
        I(f's_sub_u32 s{S.TSG}, s{S.TSG}, s{S.T1}')
        I(f's_lshr_b32 s{S.TSG}, s{S.TSG}, 1')
        hp = V.alloc('hpk', 16)
        tt = V.alloc('tt', 4)
        vHs = V.alloc('hs')
        I(f's_lshl_b32 s{S.T1}, s{S.ODD}, 3')
        I(f'v_add_u32 v{vHs}, s{S.T1}, v{S.vL16}')
        for sb in range(2):
            mrr = mr + sb; rs = vSt + 2 * sb + 1
            for j in range(7):
                d = acc + j * 8 + sb * 4
                for k in range(2):
                    sel = 'op_sel:[0,%d,0] op_sel_hi:[1,%d,1]' % (sb, sb)
                    I(f'v_pk_fma_f32 {vr(tt+2*k,2)}, {vr(c4+4*j+2*k,2)}, {vr(mr,2)}, {vr(bf+4*j+2*k,2)} {sel} neg_lo:[0,1,0] neg_hi:[0,1,0]')
                for k in range(2):
                    I(f'v_pk_fma_f32 {vr(d+2*k,2)}, {vr(d+2*k,2)}, {vr(vSt+2*sb,2)}, {vr(tt+2*k,2)} op_sel:[0,1,0] op_sel_hi:[1,1,1]')
                for k in range(4): I(f'v_max_f32 v{d+k}, 0, v{d+k}')
                for k in range(2): I(f'v_pk_mul_f32 {vr(d+2*k,2)}, {vr(d+2*k,2)}, {vr(d+2*k,2)}')
                o0 = hp + 2 * j
                for k in range(2): I(f'v_cvt_pk_bf16_f32 v{o0+k}, v{d+2*k}, v{d+2*k+1}')
            I(f's_lshl_b32 s{S.T0}, s{S.RB}, 3')
            I(f's_lshl_b32 s{S.T1}, s{S.WV}, 1')
            I(f's_add_u32 s{S.T0}, s{S.T0}, s{S.T1}')
            if sb: I(f's_add_u32 s{S.T0}, s{S.T0}, 1')
            I(f's_mul_i32 s{S.T0}, s{S.T0}, 57344')
            I(f's_add_u32 s{S.T0}, s{S.T0}, {WS_H2}')
            I(f's_lshl_b32 s{S.T1}, s{S.TP0}, 10')
            I(f's_add_u32 s{S.T1}, s{S.T1}, s{S.T0}')
            for p in range(3):
                off = f' offset:{1024*p}' if p else ''
                I(f'buffer_store_dwordx4 {vr(hp+4*p,4)}, v{S.vL16}, {s4(S.SWS)}, s{S.T1} offen{off} sc1', tag='hst')
            I(f's_lshl_b32 s{S.T1}, s{S.TSG}, 10')
            I(f's_add_u32 s{S.T1}, s{S.T1}, s{S.T0}')
            I(f'buffer_store_dwordx2 {vr(hp+12,2)}, v{vHs}, {s4(S.SWS)}, s{S.T1} offen sc1', tag='hst')
            I('s_nop 1')
        V.free('acc1', 'c4', 'b1f', 'mr', 'hpk', 'tt', 'hs', 'st')
        S.stamp(14)

    def w2_setup(self):
        S = self; V = self.V; I = self.I
        t0, t1, t2 = S.t0, S.t1, S.t2
        S.vW2 = V.alloc('vW2'); S.vT2 = V.alloc('vT2', 4)
        I(f'v_lshrrev_b32 v{t0}, 3, v{S.vLane}')
        I(f'v_and_b32 v{t1}, 7, v{S.vLane}')
        I(f'v_lshlrev_b32 v{t2}, 1, v{S.vG}')
        I(f'v_xor_b32 v{t1}, v{t1}, v{t2}')
        I(f'v_lshlrev_b32 v{t0}, 10, v{t0}')
        I(f'v_lshl_add_u32 v{S.vW2}, v{t1}, 4, v{t0}')
        I(f'v_lshrrev_b32 v{t0}, 2, v{S.vLane}')
        I(f'v_lshrrev_b32 v{t1}, 1, v{t0}')
        I(f'v_and_b32 v{t1}, 3, v{t1}')
        I(f'v_lshlrev_b32 v{t0}, 7, v{t0}')
        I(f'v_and_b32 v{t2}, 3, v{S.vLane}')
        I(f'v_lshl_add_u32 v{t0}, v{t2}, 3, v{t0}')
        I(f's_mul_i32 s{S.T0}, s{S.WV}, {7*4096}')
        if LDS_W2R: I(f's_add_u32 s{S.T0}, s{S.T0}, {LDS_W2R}')
        I(f'v_add_u32 v{t0}, s{S.T0}, v{t0}')
        for d in range(4):
            I(f'v_xor_b32 v{t2}, {d}, v{t1}')
            I(f'v_lshl_add_u32 v{S.vT2+d}, v{t2}, 5, v{t0}')
        I(f's_lshr_b32 s{S.T0}, s{S.IDX}, 3')
        I(f's_mul_i32 s{S.T0}, s{S.T0}, 3')
        I(f's_lshr_b32 s{S.T1}, s{S.XCD}, 1')
        I(f's_add_u32 s{S.ROT2}, s{S.T0}, s{S.T1}')
    def tstep(self, n, dst):
        S = self
        return [S.F(f's_add_u32 s{dst}, s{S.ROT2}, {n}'),
                S.F(f's_cmp_ge_u32 s{dst}, 14'),
                S.F(f's_cselect_b32 s{S.T7}, 14, 0'),
                S.F(f's_sub_u32 s{dst}, s{dst}, s{S.T7}'),
                S.F(f's_mul_i32 s{S.T7}, s{S.WV}, 14'),
                S.F(f's_add_u32 s{dst}, s{dst}, s{S.T7}')]
    def w2_dma(self, n):
        S = self
        L = S.tstep(n, S.T6)
        L += [S.F(f's_lshl_b32 s{S.T6}, s{S.T6}, 15'),
              S.F(f's_lshl_b32 s{S.T7}, s{S.DB}, 7'),
              S.F(f's_add_u32 s{S.T6}, s{S.T6}, s{S.T7}'),
              S.F(f's_mul_i32 s{S.T7}, s{S.WV}, {7*4096}')]
        for k in range(4):
            L.append(S.F(f's_add_u32 m0, s{S.T7}, {LDS_W2R + (n % 7) * 4096 + k * 1024}'))
            if k: L.append(S.F(f's_add_u32 s{S.T6}, s{S.T6}, 8192'))
            L.append(S.F(f'buffer_load_dwordx4 v{S.vW2}, {s4(S.SW2)}, s{S.T6} offen lds', tag=f'w2_{n}'))
        return L
    def w2_tr(self, n):
        S = self
        L = [lambda: S.e.wait_vm_tag(f'w2_{n}')]
        for d in range(4):
            for hh in range(2):
                L.append(S.F(f'ds_read_b64_tr_b16 {ar((n*4+d)*4+hh*2,2)}, v{S.vT2+d} offset:{(n%7)*4096 + hh*2048}', tag=f'tr{n}'))
        return L

    def conv(self):
        S = self; V = self.V; I = self.I; e = self.e
        t0, t1, t2, t3 = S.t0, S.t1, S.t2, S.t3
        vU = S.vU
        NS = 10
        acc = V.alloc('cacc', 32); H = V.alloc('H', 4 * NS); vHa = V.alloc('vHa')
        I(f's_lshr_b32 s{S.T0}, s{S.WV}, 1')
        I(f's_mul_i32 s{S.T0}, s{S.T0}, {UT_STRIDE}')
        I(f's_and_b32 s{S.T1}, s{S.WV}, 1')
        I(f's_lshl_b32 s{S.T1}, s{S.T1}, 6')
        I(f's_add_u32 s{S.T0}, s{S.T0}, s{S.T1}')
        I(f's_add_u32 s{S.T0}, s{S.T0}, {LDS_HP + 8}')
        I(f'v_lshlrev_b32 v{t0}, 3, v{S.vS15}')
        I(f'v_lshl_add_u32 v{t0}, v{S.vG}, 4, v{t0}')
        I(f'v_add_u32 v{vHa}, s{S.T0}, v{t0}')
        hissued = set(); ushift = [0] * 8
        def hread(n):
            r = H + ((n + 1) % NS) * 4
            o = (n + 1) * 128
            def second():
                I(f'ds_read_b64 {vr(r+2,2)}, v{vHa} offset:{o+8}'); hissued.add(n)
            return [S.F(f'ds_read_b64 {vr(r,2)}, v{vHa} offset:{o}'), second]
        def ushift_op(pj, k):
            def f():
                I(f'v_mov_b32_dpp v{vU+4*pj+k}, v{vU+4*pj+k} row_shr:4 row_mask:0xf bank_mask:0xf bound_ctrl:0')
                if k == 3: ushift[pj] += 1
            return f
        for n in (-1, 0):
            for f in hread(n): f()
        S.NHS = 4
        S.hiss = set()
        S.vHF = V.alloc('hf', 16 * S.NHS)
        vP2 = V.alloc('p2a'); vP2r = V.alloc('p2r')
        fill = Fill()
        first = set()
        cnt = 0
        w2n_tr = 0
        started = set()
        for q in range(-8, 24):
            m = q // 8; jj = q - 8 * m
            if q + 9 <= 30: fill.add(*hread(q + 9))
            if q - 1 >= -8 and q - 1 < 16:
                pj = (q - 1) - 8 * ((q - 1) // 8)
                for k in range(4): fill.add(ushift_op(pj, k))
            while w2n_tr < 14 and cnt >= 16 * w2n_tr + 4:
                fill.add(*S.w2_tr(w2n_tr))
                if w2n_tr + 3 < 14: fill.add(*S.w2_dma(w2n_tr + 3))
                w2n_tr += 1
            if q == -1:
                def pub2():
                    e.wait_vm_tag('hst'); e.barrier(); S.flag_store(WS_F2, t0, t1)
                fill.add(pub2)
            if q == 14:
                def p2():
                    I(f'v_and_b32 v{t0}, 7, v{S.vLane}')
                    I(f's_and_b32 s{S.T0}, s{S.RB}, 3')
                    I(f's_lshl_b32 s{S.T0}, s{S.T0}, 3')
                    I(f'v_add_u32 v{t0}, s{S.T0}, v{t0}')
                    I(f'v_lshlrev_b32 v{t0}, 3, v{t0}')
                    I(f'v_bfe_u32 v{t1}, v{S.vLane}, 3, 1')
                    I(f'v_add_u32 v{t0}, v{t0}, v{t1}')
                    I(f's_lshr_b32 s{S.T0}, s{S.RB}, 2')
                    I(f's_lshl_b32 s{S.T0}, s{S.T0}, 1')
                    I(f'v_add_u32 v{t0}, s{S.T0}, v{t0}')
                    I(f'v_lshlrev_b32 v{t0}, 2, v{t0}')
                    I(f'v_add_u32 v{vP2}, {WS_F2}, v{t0}')
                    S.poll_issue(vP2, vP2r)
                fill.add(p2)
            if q == 19:
                def p2c():
                    S.poll_check(vP2, vP2r)
                    S.h_setup()
                fill.add(p2c)
                for n in range(3): fill.add(*S.h_loads(n))
            rbs = [rb for rb in range(7, -1, -1) if q + rb >= -1]
            while ushift[jj] < m + 1: fill.pop(1)
            for rb in rbs:
                n = q + rb
                while n not in hissued: fill.pop(1)
                d = acc + 4 * rb
                c = vr(d, 4) if rb in started else '0'
                started.add(rb)
                I(f'v_mfma_f32_16x16x32_bf16 {vr(d,4)}, {vr(vU+4*jj,4)}, {vr(H+((n+1)%NS)*4,4)}, {c}')
                cnt += 1
                fill.pop(2)
        while w2n_tr < 14:
            fill.add(*S.w2_tr(w2n_tr)); w2n_tr += 1
        fill.flush()
        S.stamp(20)
        V.free('H', 'vHa', 'U', 'p2a', 'p2r', 'vW2', 'vT2')
        I(f's_lshl_b32 s{S.T0}, s{S.WV}, 12')
        I(f's_add_u32 s{S.T0}, s{S.T0}, {LDS_CRED}')
        I(f'v_add_u32 v{t0}, s{S.T0}, v{S.vL16}')
        I(f's_xor_b32 s{S.T1}, s{S.WV}, 1')
        I(f's_lshl_b32 s{S.T1}, s{S.T1}, 12')
        I(f's_add_u32 s{S.T1}, s{S.T1}, {LDS_CRED}')
        I(f'v_add_u32 v{t1}, s{S.T1}, v{S.vL16}')
        rx = V.alloc('rx', 16); yo = V.alloc('yo', 8)
        I(f'v_lshlrev_b32 v{t2}, 3, v{S.vS15}')
        I(f'v_lshl_add_u32 v{t2}, v{S.vG}, 10, v{t2}')
        I(f's_lshl_b32 s{S.T2}, s{S.DCH}, 12')
        I(f's_add_u32 s{S.T2}, s{S.T2}, {WS_YT}')
        lodd = S.L('cvo'); lend = S.L('cve')
        I(f's_and_b32 s{S.T3}, s{S.WV}, 1')
        I(f's_cmp_eq_u32 s{S.T3}, 0')
        I(f's_cbranch_scc0 {lodd}')
        snap = ([dict(x) for x in e.vm], [dict(x) for x in e.lg], list(e.hist))
        for par in range(2):
            if par == 1:
                I(f's_branch {lend}')
                e.label(lodd)
                e.vm, e.lg, e.hist = [dict(x) for x in snap[0]], [dict(x) for x in snap[1]], list(snap[2])
            keep = [0, 1, 2, 3] if par == 0 else [4, 5, 6, 7]
            send = [4, 5, 6, 7] if par == 0 else [0, 1, 2, 3]
            for k, rb in enumerate(send):
                I(f'ds_write_b128 v{t0}, {vr(acc+4*rb,4)} offset:{1024*k}')
            e.wait_lg(0)
            e.barrier()
            for k in range(4):
                I(f'ds_read_b128 {vr(rx+4*k,4)}, v{t1} offset:{1024*k}')
            for k, rb in enumerate(keep):
                for h2 in range(2):
                    I(f'v_pk_add_f32 {vr(rx+4*k+2*h2,2)}, {vr(rx+4*k+2*h2,2)}, {vr(acc+4*rb+2*h2,2)}')
                for h2 in range(2):
                    I(f'v_cvt_pk_bf16_f32 v{yo+2*k+h2}, v{rx+4*k+2*h2}, v{rx+4*k+2*h2+1}')
                I(f'buffer_store_dwordx2 {vr(yo+2*k,2)}, v{t2}, {s4(S.SWS)}, s{S.T2} offen offset:{128*rb} sc1', tag='yst')
        e.label(lend)
        V.free('cacc', 'rx', 'yo')
        S.stamp(21)

    def h_setup(self):
        S = self; I = self.I
        for sg in range(4):
            I(f's_add_u32 s{S.T0}, s{S.WV}, {sg}')
            I(f's_and_b32 s{S.T0}, s{S.T0}, 3')
            I(f's_lshl_b32 s{S.T1}, s{S.RB2}, 2')
            I(f's_add_u32 s{S.T0}, s{S.T0}, s{S.T1}')
            I(f's_mul_i32 s{S.T0}, s{S.T0}, 57344')
            I(f's_add_u32 s{S.HB+sg}, s{S.T0}, {WS_H2}')
    def h_loads(self, n):
        S = self
        L = S.tstep(n, S.T6)
        L.append(S.F(f's_lshl_b32 s{S.T6}, s{S.T6}, 10'))
        for sg in range(4):
            L.append(S.F(f's_add_u32 s{S.T7}, s{S.T6}, s{S.HB+sg}'))
            L.append(S.F(f'buffer_load_dwordx4 {vr(S.vHF+(n%S.NHS)*16+sg*4,4)}, v{S.vL16}, {s4(S.SWS)}, s{S.T7} offen sc1', tag=f'h{n}'))
        L.append(lambda: S.hiss.add(n))
        return L

    def gemm2(self):
        S = self; V = self.V; I = self.I; e = self.e
        t0, t1, t2, t3 = S.t0, S.t1, S.t2, S.t3
        acc = V.alloc('acc2', 64)
        vP3 = V.alloc('p3a'); vP3r = V.alloc('p3r')
        vY = V.alloc('yld', 8); vXt = V.alloc('xt', 8); vB2 = V.alloc('b2', 8); vSt = V.alloc('st2', 2)
        X = V.alloc('X', 16); P = V.alloc('P', 16); B2f = V.alloc('B2f', 16); ytr = V.alloc('ytr', 8)
        vXo = V.alloc('xo')
        fill = Fill()
        for n in range(14):
            if n + 3 < 14: fill.add(*S.h_loads(n + 3))
            if n == 2:
                def pub3():
                    e.wait_vm_tag('yst'); e.barrier(); S.flag_store(WS_F3, t0, t1)
                fill.add(pub3)
            if n == 4:
                def p3():
                    I(f's_lshl_b32 s{S.T0}, s{S.RB2}, 6')
                    I(f's_lshl_b32 s{S.T1}, s{S.WV}, 4')
                    I(f's_add_u32 s{S.T0}, s{S.T0}, s{S.T1}')
                    I(f'v_add_u32 v{t0}, s{S.T0}, v{S.vS15}')
                    I(f'v_lshlrev_b32 v{t1}, 3, v{t0}')
                    I(f's_mov_b32 s{S.T1}, {WS_STATS}')
                    I(f'buffer_load_dwordx2 {vr(vSt,2)}, v{t1}, {s4(S.SWS)}, s{S.T1} offen sc1')
                    I(f'v_lshlrev_b32 v{t0}, 10, v{t0}')
                    I(f'v_lshl_add_u32 v{t0}, v{S.vG}, 3, v{t0}')
                    I(f's_lshl_b32 s{S.T1}, s{S.DB}, 7')
                    I(f'v_add_u32 v{vXo}, s{S.T1}, v{t0}')
                    for d in range(4):
                        I(f'buffer_load_dwordx2 {vr(vXt+2*d,2)}, v{vXo}, {s4(S.SX)}, 0 offen offset:{32*d}')
                    I(f'v_lshlrev_b32 v{t0}, 3, v{S.vG}')
                    I(f'v_add_u32 v{t0}, s{S.T1}, v{t0}')
                    for d in range(4):
                        I(f'global_load_dwordx2 {vr(vB2+2*d,2)}, v{t0}, {s2_(S.PB2)} offset:{32*d}')
                    I(f'v_and_b32 v{t0}, 31, v{S.vLane}')
                    I(f'v_lshlrev_b32 v{t0}, 3, v{t0}')
                    I(f'v_add_u32 v{t0}, s{S.DB}, v{t0}')
                    I(f'v_lshlrev_b32 v{t0}, 2, v{t0}')
                    I(f'v_add_u32 v{vP3}, {WS_F3}, v{t0}')
                    S.poll_issue(vP3, vP3r)
                fill.add(p3)
            if n == 8:
                def p3c():
                    S.poll_check(vP3, vP3r)
                    I(f'v_lshrrev_b32 v{t0}, 3, v{S.vLane}')
                    I(f's_lshl_b32 s{S.T0}, s{S.DB}, 6')
                    I(f's_lshl_b32 s{S.T1}, s{S.WV}, 4')
                    I(f's_add_u32 s{S.T0}, s{S.T0}, s{S.T1}')
                    I(f'v_add_u32 v{t0}, s{S.T0}, v{t0}')
                    I(f'v_lshlrev_b32 v{t0}, 12, v{t0}')
                    I(f'v_and_b32 v{t1}, 7, v{S.vLane}')
                    I(f'v_lshl_add_u32 v{t0}, v{t1}, 4, v{t0}')
                    I(f's_lshl_b32 s{S.T1}, s{S.RB2}, 7')
                    I(f's_add_u32 s{S.T1}, s{S.T1}, {WS_YT}')
                    I(f'buffer_load_dwordx4 {vr(vY,4)}, v{t0}, {s4(S.SWS)}, s{S.T1} offen sc1')
                    I(f'v_add_u32 v{t0}, 0x8000, v{t0}')
                    I(f'buffer_load_dwordx4 {vr(vY+4,4)}, v{t0}, {s4(S.SWS)}, s{S.T1} offen sc1')
                fill.add(p3c)
                for d in range(4):
                    for k in range(2):
                        fill.add(S.F(f'v_lshlrev_b32 v{X+4*d+2*k}, 16, v{vXt+2*d+k}'),
                                 S.F(f'v_and_b32 v{X+4*d+2*k+1}, 0xffff0000, v{vXt+2*d+k}'),
                                 S.F(f'v_lshlrev_b32 v{B2f+4*d+2*k}, 16, v{vB2+2*d+k}'),
                                 S.F(f'v_and_b32 v{B2f+4*d+2*k+1}, 0xffff0000, v{vB2+2*d+k}'))
                for k in range(8):
                    fill.add(S.F(f'v_pk_add_f32 {vr(P+2*k,2)}, {vr(X+2*k,2)}, {vr(vSt,2)} op_sel:[0,0] op_sel_hi:[1,0] neg_lo:[0,1] neg_hi:[0,1]'),
                             S.F(f'v_pk_mul_f32 {vr(P+2*k,2)}, {vr(P+2*k,2)}, {vr(vSt,2)} op_sel:[0,1] op_sel_hi:[1,1]'))
            if n == 11:
                def yw():
                    I(f'v_lshrrev_b32 v{t0}, 3, v{S.vLane}')
                    I(f's_lshl_b32 s{S.T1}, s{S.WV}, 4')
                    I(f'v_add_u32 v{t0}, s{S.T1}, v{t0}')
                    I(f'v_mul_u32_u24 v{t0}, 144, v{t0}')
                    I(f'v_and_b32 v{t1}, 7, v{S.vLane}')
                    I(f'v_lshl_add_u32 v{t0}, v{t1}, 4, v{t0}')
                    I(f'v_add_u32 v{t0}, {LDS_YT}, v{t0}')
                    I(f'ds_write_b128 v{t0}, {vr(vY,4)}')
                    I(f'ds_write_b128 v{t0}, {vr(vY+4,4)} offset:{8*144}')
                    e.wait_lg(0)
                    e.barrier()
                    I(f'v_lshrrev_b32 v{t0}, 2, v{S.vLane}')
                    I(f'v_mul_u32_u24 v{t0}, 144, v{t0}')
                    I(f'v_and_b32 v{t1}, 3, v{S.vLane}')
                    I(f'v_lshl_add_u32 v{t0}, v{t1}, 3, v{t0}')
                    I(f's_lshl_b32 s{S.T1}, s{S.WV}, 5')
                    I(f's_add_u32 s{S.T1}, s{S.T1}, {LDS_YT}')
                    I(f'v_add_u32 v{t0}, s{S.T1}, v{t0}')
                    for d in range(4):
                        I(f'ds_read_b64_tr_b16 {vr(ytr+2*d,2)}, v{t0} offset:{16*144*d}')
                fill.add(yw)
            if n == 12:
                for d in range(4):
                    for k in range(2):
                        fill.add(S.F(f'v_lshlrev_b32 v{vY+2*k}, 16, v{ytr+2*d+k}'),
                                 S.F(f'v_and_b32 v{vY+2*k+1}, 0xffff0000, v{ytr+2*d+k}'),
                                 S.F(f'v_pk_mul_f32 {vr(P+4*d+2*k,2)}, {vr(P+4*d+2*k,2)}, {vr(vY+2*k,2)}'))
            hb = S.vHF + (n % S.NHS) * 16
            while n not in S.hiss: fill.pop(1)
            for sg in range(4):
                for d in range(4):
                    dd = acc + (d * 4 + sg) * 4
                    c = '0' if n == 0 else vr(dd, 4)
                    I(f'v_mfma_f32_16x16x32_bf16 {vr(dd,4)}, {ar((n*4+d)*4,4)}, {vr(hb+sg*4,4)}, {c}')
                    fill.pop(2)
        fill.flush()
        S.stamp(36)
        V.free('hf', 'p3a', 'p3r', 'xt', 'b2', 'ytr', 'yld', 'st2')
        wa = V.alloc('wa', 3)
        for sg in range(1, 4):
            I(f's_add_u32 s{S.T0}, s{S.WV}, {sg}')
            I(f's_and_b32 s{S.T0}, s{S.T0}, 3')
            I(f's_mul_i32 s{S.T0}, s{S.T0}, 12288')
            I(f's_add_u32 s{S.T0}, s{S.T0}, {LDS_FRED + (sg-1)*4096}')
            I(f'v_add_u32 v{wa+sg-1}, s{S.T0}, v{S.vL16}')
        for sg in range(1, 4):
            for d in range(4):
                I(f'ds_write_b128 v{wa+sg-1}, {vr(acc+(d*4+sg)*4,4)} offset:{1024*d}')
        I(f's_mul_i32 s{S.T0}, s{S.WV}, 12288')
        if LDS_FRED: I(f's_add_u32 s{S.T0}, s{S.T0}, {LDS_FRED}')
        I(f'v_add_u32 v{t0}, s{S.T0}, v{S.vL16}')
        e.wait_lg(0)
        e.barrier()
        rx = V.alloc('rx2', 48)
        for k in range(3):
            for d in range(4):
                I(f'ds_read_b128 {vr(rx+(k*4+d)*4,4)}, v{t0} offset:{k*4096 + d*1024}')
        S.stamp(37)
        o4 = V.alloc('o4', 16); ee = V.alloc('ee', 16); pk = V.alloc('pk2', 8)
        I(f's_mov_b32 s{S.T2}, 0xbfb8aa3b')
        I(f's_mov_b32 s{S.T3}, 0xbfb8aa3b')
        I(f's_mov_b32 s{S.T4}, 1.0')
        I(f's_mov_b32 s{S.T5}, 1.0')
        assert S.T2 % 2 == 0 and S.T4 % 2 == 0
        for d in range(4):
            for h in range(2):
                a0 = acc + (d * 4 + 0) * 4 + 2 * h
                o = o4 + 4 * d + 2 * h
                I(f'v_pk_add_f32 {vr(o,2)}, {vr(a0,2)}, {vr(B2f+4*d+2*h,2)}')
                for k in range(3):
                    I(f'v_pk_add_f32 {vr(o,2)}, {vr(o,2)}, {vr(rx+(k*4+d)*4+2*h,2)}')
        for k in range(8): I(f'v_pk_mul_f32 {vr(ee+2*k,2)}, {vr(o4+2*k,2)}, {s2_(S.T2)}')
        for k in range(16): I(f'v_exp_f32 v{ee+k}, v{ee+k}')
        for k in range(8): I(f'v_pk_add_f32 {vr(ee+2*k,2)}, {vr(ee+2*k,2)}, {s2_(S.T4)}')
        for k in range(16): I(f'v_rcp_f32 v{ee+k}, v{ee+k}')
        for k in range(8): I(f'v_pk_mul_f32 {vr(o4+2*k,2)}, {vr(o4+2*k,2)}, {vr(P+2*k,2)}')
        for k in range(8): I(f'v_pk_fma_f32 {vr(o4+2*k,2)}, {vr(o4+2*k,2)}, {vr(ee+2*k,2)}, {vr(X+2*k,2)}')
        for d in range(4):
            for h in range(2):
                I(f'v_cvt_pk_bf16_f32 v{pk+2*d+h}, v{o4+4*d+2*h}, v{o4+4*d+2*h+1}')
            I(f'buffer_store_dwordx2 {vr(pk+2*d,2)}, v{vXo}, {s4(S.SO)}, 0 offen offset:{32*d}')

def wrap(body, vgprs=512):
    hdr = open(os.path.join(os.path.dirname(os.path.abspath(__file__)), 'header.txt')).read()
    txt = hdr
    txt += f'; @launch grid=(256,1,1) block=(256,1,1) lds={LDS_TOTAL}\n'
    txt += '.amdgcn_target "amdgcn-amd-amdhsa--gfx950"\n.text\n'
    txt += f'.globl {KNAME}\n.p2align 8\n.type {KNAME},@function\n{KNAME}:\n'
    txt += body
    txt += '.section .rodata,"a"\n.p2align 6\n'
    txt += f'.amdhsa_kernel {KNAME}\n'
    txt += '  .amdhsa_next_free_vgpr 512\n  .amdhsa_next_free_sgpr 102\n  .amdhsa_accum_offset 256\n'
    txt += '  .amdhsa_group_segment_fixed_size 0\n  .amdhsa_kernarg_size 112\n  .amdhsa_user_sgpr_count 2\n'
    txt += '  .amdhsa_user_sgpr_kernarg_segment_ptr 1\n  .amdhsa_system_sgpr_workgroup_id_x 1\n'
    txt += '  .amdhsa_float_denorm_mode_32 3\n'
    txt += '.end_amdhsa_kernel\n'
    return txt

if __name__ == '__main__':
    import argparse
    ap = argparse.ArgumentParser()
    ap.add_argument('-o', default='cdna_kernels/' + NAME + '.s')
    ap.add_argument('--stop', default=None)
    ap.add_argument('--prof', action='store_true')
    a = ap.parse_args()
    g = Gen(dict(stop=a.stop, prof=a.prof))
    g.build()
    open(a.o, 'w').write(wrap(g.e.text()))
    print('instrs', g.e.n_instr, 'nops', g.e.n_nops, g.e.stats, 'vgpr hw', g.V.hw, file=sys.stderr)
```
